```python
import torch

def _softmax(x, axis=-1):
    return torch.softmax(x, dim=axis)
def _gelu(x):
    return torch.nn.functional.gelu(x, approximate="tanh")
def _silu(x):
    return torch.nn.functional.silu(x)
def _sigmoid(x):
    return torch.sigmoid(x)
def _layernorm(x, axis=-1, eps=1e-5):
    m = x.mean(dim=axis, keepdim=True)
    v = x.var(dim=axis, keepdim=True, unbiased=False)
    return (x - m) / torch.sqrt(v + eps)
def _scatter_add(tgt, idx, src, axis=0):
    return tgt.clone().index_add_(axis, idx, src)
def _segment_sum(src, seg, n):
    out = torch.zeros((n,) + src.shape[1:], dtype=src.dtype)
    return out.index_add_(0, seg, src)
def _pad(x, pw):
    flat = tuple(v for pair in reversed(pw) for v in pair)
    return torch.nn.functional.pad(x, flat)

kernel_name = 'gated_mix__softmax_full_mha__mixer_token_mlp__prompt'

def setup_inputs():

    _w = (lambda a: (lambda t: t.to(torch.bfloat16) if t.is_floating_point() else t)(torch.as_tensor(a)))
    def _A_setup():
        B, S, D = 1, 2048, 512
        return {
            "x": _w((lambda *s: torch.randn(*s, dtype=torch.bfloat16) * 0.05)(B, S, D)),
            "wqkv": _w((lambda *s: torch.randn(*s, dtype=torch.bfloat16) * 0.8)(D, 3 * D)),
            "wo": _w((lambda *s: torch.randn(*s, dtype=torch.bfloat16) * 0.05)(D, D)),
        }
    _A_in = _A_setup()

    def _B_setup():
        B, S, D, F = 1, 2048, 512, 1792
        return {
            "x": _w((lambda *s: torch.randn(*s, dtype=torch.bfloat16) * 0.05)(B, S, D)),
            "w1": _w((lambda *s: torch.randn(*s, dtype=torch.bfloat16) * 0.8)(S, F) * (S ** -0.5)),
            "b1": _w((lambda *s: torch.randn(*s, dtype=torch.bfloat16) * 12.8)(F) * 0.02),
            "w2": _w((lambda *s: torch.randn(*s, dtype=torch.bfloat16) * 0.05)(F, S) * (F ** -0.5)),
            "b2": _w((lambda *s: torch.randn(*s, dtype=torch.bfloat16) * 0.8)(S) * 0.02),
        }
    _B_in = _B_setup()

    return {
        "A_x": _A_in["x"],
        "A_wqkv": _A_in["wqkv"],
        "A_wo": _A_in["wo"],
        "B_x": _B_in["x"],
        "B_w1": _B_in["w1"],
        "B_b1": _B_in["b1"],
        "B_w2": _B_in["w2"],
        "B_b2": _B_in["b2"],
        "gate_w": _w((lambda *s: torch.randn(*s, dtype=torch.bfloat16) * 0.05)(512) * 16.0),
    }

def reference(A_x, A_wqkv, A_wo, B_x, B_w1, B_b1, B_w2, B_b2, gate_w):
    def _A_ref(x, wqkv, wo):
        B, S, D = x.shape
        H = 32; Dh = D // H
        qkv = (lambda x, *d: x.permute(*d))((x @ wqkv).reshape(B, S, 3, H, Dh), 2, 0, 3, 1, 4)
        q, k, v = qkv[0], qkv[1], qkv[2]
        scale = Dh ** -0.5
        scores = torch.einsum("bhqd,bhkd->bhqk", q, k) * scale
        p = _softmax(scores, axis=-1)
        o = torch.einsum("bhqk,bhkd->bhqd", p, v)
        return (lambda x, *d: x.permute(*d))(o, 0, 2, 1, 3).reshape(B, S, D) @ wo

    def _B_ref(x, w1, b1, w2, b2):
        B, S, D = x.shape
        h = _layernorm(x, axis=-1)
        u = torch.einsum("bsd,sf->bdf", h, w1) + b1
        u = _gelu(u)
        y = torch.einsum("bdf,fs->bds", u, w2) + b2
        return (lambda x, *d: x.permute(*d))(y, 0, 2, 1)

    x = A_x
    g = _sigmoid((x * gate_w).sum(-1, keepdims=True))
    a = _A_ref(x, A_wqkv, A_wo)
    b = _B_ref(x, B_w1, B_b1, B_w2, B_b2)
    return g * a + (1 - g) * b
```

```python
class Asm:
    def __init__(self):
        self.L = []
        self.uid = 0
    def __call__(self, s, *more):
        for x in (s,) + more:
            for line in x.split("\n"):
                line = line.strip()
                if line: self.L.append("    " + line)
    def label(self, l): self.L.append(l + ":")
    def raw(self, s): self.L.append(s)
    def c(self, s): self.L.append("    ; " + s)
    def newlabel(self, p="L"):
        self.uid += 1
        return f"{p}_{self.uid}"
    def text(self): return "\n".join(self.L) + "\n"

def vr(b, n=1):
    return f"v{b}" if n == 1 else f"v[{b}:{b+n-1}]"
def sr(b, n=1):
    return f"s{b}" if n == 1 else f"s[{b}:{b+n-1}]"

MFMA = "v_mfma_f32_32x32x16_bf16"
SMF = "v_smfmac_f32_32x32x32_bf16"

def srd(a, s, base_lo, base_hi, off, size):
    if off:
        a(f"s_add_u32 s{s}, s{base_lo}, {off:#x}", f"s_addc_u32 s{s+1}, s{base_hi}, 0")
    else:
        a(f"s_mov_b32 s{s}, s{base_lo}", f"s_mov_b32 s{s+1}, s{base_hi}")
    a(f"s_mov_b32 s{s+2}, {size:#x}", f"s_mov_b32 s{s+3}, 0x20000")

def kernel_header(a, name):
    a.raw(f".globl {name}")
    a.raw(".p2align 8")
    a.raw(f".type {name},@function")
    a.label(name)

def kernel_desc(name, vgpr, sgpr=96):
    return f""".p2align 6
.amdhsa_kernel {name}
  .amdhsa_next_free_vgpr {vgpr}
  .amdhsa_next_free_sgpr {sgpr}
  .amdhsa_accum_offset {(vgpr + 3) // 4 * 4}
  .amdhsa_group_segment_fixed_size 0
  .amdhsa_kernarg_size 96
  .amdhsa_user_sgpr_count 2
  .amdhsa_user_sgpr_kernarg_segment_ptr 1
  .amdhsa_system_sgpr_workgroup_id_x 1
.end_amdhsa_kernel
"""

def f32bits(x):
    import struct
    return struct.unpack("<I", struct.pack("<f", x))[0]
```

```python
from asmlib import *
import math

WS_Q = 0x000000; WS_K = 0x200000; WS_V = 0x400000; WS_H = 0x600000; WS_U = 0x800000; WS_O = 0xA00000
WS_YB = 0xC00000; WS_G = 0x1000000; WS_BQ = 0x1002000; WS_BK = 0x1004000; WS_FL = 0x1010000
LOG2E = 1.4426950408889634
QSCALE = 0.25 * LOG2E
ST = "sc1"
LD = "sc1"

def prologue(a, nwg, lend):
    a(f"s_cmp_ge_u32 s2, {nwg}", f"s_cbranch_scc1 {lend}",
      "s_load_dwordx16 s[16:31], s[0:1], 0", "s_load_dwordx8 s[32:39], s[0:1], 64",
      "v_lshrrev_b32 v1, 6, v0", "v_and_b32 v0, 63, v0", "v_readfirstlane_b32 s3, v1",
      "s_and_b32 s4, s2, 7", "s_lshr_b32 s5, s2, 3", "s_mov_b32 s70, 0x40000")

def phi(a, d, n, t):
    a(f"v_and_b32 v{d}, 0x13, v{n}", f"v_and_b32 v{t}, 4, v{n}", f"v_lshl_or_b32 v{d}, v{t}, 1, v{d}",
      f"v_and_b32 v{t}, 8, v{n}", f"v_lshrrev_b32 v{t}, 1, v{t}", f"v_or_b32 v{d}, v{d}, v{t}")

QKV_SLOT = 28672
def qkv_map(a):
    a("s_and_b32 s6, s4, 3", "s_lshl_b32 s6, s6, 2", "s_and_b32 s7, s5, 3", "s_add_u32 s8, s6, s7",
      "s_lshr_b32 s6, s4, 2", "s_lshl_b32 s6, s6, 3", "s_lshr_b32 s7, s5, 2", "s_add_u32 s9, s6, s7")

def qkv_producer(a, nslot=4):
    a.c("---- QKV producer ----")
    a("s_sub_u32 s10, s3, 4")
    a("v_lshrrev_b32 v10, 3, v0", "v_and_b32 v11, 7, v0", "v_lshrrev_b32 v12, 4, v0", "s_lshl_b32 s11, s10, 5")
    for j in range(4):
        a(f"v_add_u32 v13, {4*j}, v12", "v_and_b32 v13, 7, v13", "v_xor_b32 v13, v13, v11", "v_lshlrev_b32 v13, 4, v13",
          f"v_add_u32 v14, {8*j}, v10", "v_add_u32 v14, s11, v14", f"v_lshl_add_u32 v{2+j}, v14, 10, v13")
    a("s_lshl_b32 s11, s10, 4", "s_mov_b32 s12, 43691", "s_movk_i32 s13, 3072")
    for j in range(3):
        a(f"v_add_u32 v13, {64*j}, v0", "v_mul_u32_u24 v14, s12, v13", "v_lshrrev_b32 v14, 19, v14",
          "v_mul_u32_u24 v15, 12, v14", "v_sub_u32 v15, v13, v15", "v_add_u32 v14, s11, v14",
          "v_mul_u32_u24 v14, s13, v14", f"v_lshl_add_u32 v{6+j}, v15, 4, v14")
    a("s_lshl_b32 s11, s10, 12", "s_mul_i32 s12, s10, 3072", "s_add_u32 s12, s12, 16384")
    a("s_waitcnt lgkmcnt(0)")
    a("s_lshl_b32 s6, s8, 17", "s_add_u32 s40, s16, s6", "s_addc_u32 s41, s17, 0", "s_mov_b32 s42, 0x20000", "s_mov_b32 s43, 0x20000")
    a("s_mul_i32 s6, s9, 192", "s_add_u32 s44, s18, s6", "s_addc_u32 s45, s19, 0", f"s_sub_u32 s46, {512*3072}, s6", "s_mov_b32 s47, 0x20000")
    def issue(c):
        sl = (c % nslot) * QKV_SLOT
        a(f"s_movk_i32 s6, {128*c}", f"s_mov_b32 s7, {196608*c}")
        for j in range(4):
            a(f"s_add_u32 m0, s11, {sl + j*1024}"); a("s_nop 0"); a(f"buffer_load_dwordx4 v{2+j}, s[40:43], s6 offen lds")
        for j in range(3):
            a(f"s_add_u32 m0, s12, {sl + j*1024}"); a("s_nop 0"); a(f"buffer_load_dwordx4 v{6+j}, s[44:47], s7 offen lds")
    for c in range(nslot): issue(c)
    issued = nslot
    for c in range(8):
        a(f"s_waitcnt vmcnt({7 * (issued - c - 1)})", "s_barrier")
        if c >= 1 and issued < 8:
            issue(issued); issued += 1

def qkv_consumer(a, nslot=4):
    a.c("---- QKV consumer ----")
    ACC = 0 + 16
    F = [64, 80, 96]
    XA = [2, 3, 4, 5]; XB = [6, 7, 8, 9]; WA = 10; WB = 11
    HI = 2 * QKV_SLOT
    a("v_and_b32 v12, 31, v0", "v_lshrrev_b32 v13, 5, v0")
    phi(a, 14, 12, 15)
    a("v_lshrrev_b32 v15, 1, v14", "v_and_b32 v15, 7, v15", "v_xor_b32 v15, v15, v13",
      "s_lshl_b32 s6, s3, 5", "v_add_u32 v112, s6, v14", "v_lshlrev_b32 v112, 7, v112")
    for s in range(4):
        a(f"v_xor_b32 v113, {2*s}, v15", f"v_lshl_add_u32 v{XA[s]}, v113, 4, v112", f"v_add_u32 v{XB[s]}, {HI}, v{XA[s]}")
    a("v_lshrrev_b32 v112, 5, v0", "v_lshlrev_b32 v112, 3, v112", "v_and_b32 v113, 15, v0", "v_lshrrev_b32 v114, 2, v113",
      "v_add_u32 v112, v112, v114", "s_movk_i32 s6, 192", "v_mul_u32_u24 v112, s6, v112",
      "v_bfe_u32 v114, v0, 4, 1", "v_lshl_add_u32 v112, v114, 5, v112",
      "v_and_b32 v114, 1, v0", "v_lshl_add_u32 v112, v114, 4, v112",
      "v_bfe_u32 v114, v0, 1, 1", "v_lshl_add_u32 v112, v114, 3, v112",
      f"v_add_u32 v{WA}, 16384, v112", f"v_add_u32 v{WB}, {HI}, v{WA}")
    def reads(t):
        c, s = divmod(t, 4); sl = c % nslot
        hi = sl >= 2; so = (sl % 2) * QKV_SLOT
        f = F[t % 3]
        a(f"ds_read_b128 {vr(f,4)}, v{(XB if hi else XA)[s]} offset:{so}")
        for b in range(3):
            for r in range(2):
                a(f"ds_read_b64_tr_b16 {vr(f+4+4*b+2*r,2)}, v{WB if hi else WA} offset:{so + s*3072 + r*768 + b*64}")
    def mf(t, types):
        f = F[t % 3]
        for b in range(3):
            d = vr(ACC + 16*b, 16); cin = "0" if t == 0 else d
            x = vr(f, 4); w = vr(f + 4 + 4*b, 4)
            a(f"{MFMA} {d}, {w}, {x}, {cin}" if types[b] == "q" else f"{MFMA} {d}, {x}, {w}, {cin}")
    lepi = a.newlabel("L_qkv_epi")
    lv1 = a.newlabel("L_qkv_qqv"); lv2 = a.newlabel("L_qkv_vvv")
    a("s_cmp_eq_u32 s9, 10", f"s_cbranch_scc1 {lv1}", "s_cmp_gt_u32 s9, 10", f"s_cbranch_scc1 {lv2}")
    for types, lab in (("qqq", None), ("qqv", lv1), ("vvv", lv2)):
        if lab: a.label(lab)
        for c in range(8):
            a("s_barrier")
            reads(4*c); reads(4*c + 1)
            if c: mf(4*c - 1, types)
            a("s_waitcnt lgkmcnt(7)"); mf(4*c, types)
            reads(4*c + 2)
            a("s_waitcnt lgkmcnt(7)"); mf(4*c + 1, types)
            reads(4*c + 3)
            a("s_waitcnt lgkmcnt(7)"); mf(4*c + 2, types)
            a("s_waitcnt lgkmcnt(0)")
        mf(31, types)
        if types != "vvv": a(f"s_branch {lepi}")
    a.label(lepi)
    srd(a, 40, 38, 39, WS_Q, 0x600000)
    a("v_lshlrev_b32 v2, 9, v13", "v_lshl_add_u32 v2, v14, 4, v2",
      "v_lshrrev_b32 v3, 4, v12", "v_lshlrev_b32 v3, 16, v3", "v_lshl_add_u32 v3, v13, 8, v3", "v_and_b32 v4, 15, v12", "v_lshl_add_u32 v3, v4, 4, v3",
      "v_mov_b32 v4, 0", "v_mov_b32 v5, 0",
      "s_lshl_b32 s10, s8, 2", "s_add_u32 s10, s10, s3", "s_lshl_b32 s10, s10, 10",
      "s_mul_i32 s11, s9, 3", f"s_mov_b32 s13, {f32bits(QSCALE):#x}")
    a("s_nop 7")
    for b in range(3):
        A = ACC + 16*b
        lv = a.newlabel("L_ev"); lk = a.newlabel("L_ek"); ln = a.newlabel("L_en")
        a(f"s_add_u32 s12, s11, {b}", "s_lshl_b32 s14, s12, 17", "s_add_u32 s14, s14, s10",
          "s_cmp_ge_u32 s12, 32", f"s_cbranch_scc1 {lv}", "s_cmp_ge_u32 s12, 16", f"s_cbranch_scc1 {lk}")
        for r in range(16): a(f"v_mul_f32 v{A+r}, s13, v{A+r}")
        a.label(lk)
        a(f"v_mul_f32 v6, v{A}, v{A}", f"v_mul_f32 v7, v{A+8}, v{A+8}")
        for r in range(1, 8): a(f"v_fmac_f32 v6, v{A+r}, v{A+r}", f"v_fmac_f32 v7, v{A+8+r}, v{A+8+r}")
        for r in range(8): a(f"v_cvt_pk_bf16_f32 v{64+r}, v{A+2*r}, v{A+2*r+1}")
        a("v_permlane32_swap_b32 v6, v7", "s_add_u32 s15, s14, 0x10000",
          f"buffer_store_dwordx4 v[64:67], v2, s[40:43], s14 offen {ST}", f"buffer_store_dwordx4 v[68:71], v2, s[40:43], s15 offen {ST}",
          "v_add_f32 v6, v6, v7", "s_cmp_ge_u32 s12, 16", "s_cselect_b32 s6, 0, -1", "s_cselect_b32 s7, -1, 0",
          "v_and_b32 v7, s6, v6", "v_max_f32 v4, v4, v7", "v_and_b32 v7, s7, v6", "v_max_f32 v5, v5, v7",
          f"s_branch {ln}")
        a.label(lv)
        for r in range(8): a(f"v_cvt_pk_bf16_f32 v{64+r}, v{A+2*r}, v{A+2*r+1}")
        a(f"buffer_store_dwordx4 v[64:67], v3, s[40:43], s14 offen {ST}", f"buffer_store_dwordx4 v[68:71], v3, s[40:43], s14 offen offset:512 {ST}")
        a.label(ln)
        a("s_nop 1")
    for ctl in ("quad_perm:[1,0,3,2]", "quad_perm:[2,3,0,1]", "row_half_mirror", "row_mirror"):
        a(f"v_max_f32_dpp v4, v4, v4 {ctl} row_mask:0xf bank_mask:0xf", f"v_max_f32_dpp v5, v5, v5 {ctl} row_mask:0xf bank_mask:0xf", "s_nop 0")
    a("s_nop 0", "v_permlane16_swap_b32 v4, v5", "v_max_f32 v4, v4, v5", "v_mov_b32 v5, v4", "s_nop 1", "v_permlane32_swap_b32 v4, v5", "v_max_f32 v4, v4, v5")
    srd(a, 44, 38, 39, WS_BQ, 0x4000)
    a("s_lshl_b32 s6, s9, 4", "s_add_u32 s6, s6, s8", "s_lshl_b32 s6, s6, 2", "s_add_u32 s6, s6, s3", "s_lshl_b32 s6, s6, 2",
      "v_lshlrev_b32 v5, 9, v0", "s_mov_b64 exec, 0x10001",
      f"buffer_store_dword v4, v5, s[44:47], s6 offen {ST}", "s_mov_b64 exec, -1")

LN_STRIDE = 1088
def ln_role(a, scratch, nbar_after=0):
    a.c("---- LN / gate ----")
    a("s_sub_u32 s10, s3, 8", "s_lshl_b32 s11, s8, 4", "s_add_u32 s11, s11, s9",
      "s_lshl_b32 s12, s11, 3", "s_lshl_b32 s6, s10, 1", "s_add_u32 s12, s12, s6",
      "v_lshlrev_b32 v2, 4, v0", "s_waitcnt lgkmcnt(0)")
    a("s_lshl_b32 s6, s12, 10", "s_add_u32 s40, s16, s6", "s_addc_u32 s41, s17, 0", "s_movk_i32 s42, 2048", "s_mov_b32 s43, 0x20000")
    srd(a, 44, 32, 33, 0, 1024)
    a("buffer_load_dwordx4 v[4:7], v2, s[40:43], 0 offen", "buffer_load_dwordx4 v[8:11], v2, s[40:43], 0 offen offset:1024",
      "buffer_load_dwordx4 v[12:15], v2, s[44:47], 0 offen", "s_barrier", "s_waitcnt vmcnt(0)")
    for src, dst in ((4, 16), (8, 24), (12, 32)):
        for i in range(4):
            a(f"v_lshlrev_b32 v{dst+2*i}, 16, v{src+i}", f"v_and_b32 v{dst+2*i+1}, 0xffff0000, v{src+i}")
    a("v_add_f32 v40, v16, v17", "v_add_f32 v41, v24, v25", "v_mul_f32 v42, v16, v32", "v_mul_f32 v43, v24, v32")
    for i in range(2, 8): a(f"v_add_f32 v40, v40, v{16+i}", f"v_add_f32 v41, v41, v{24+i}")
    for i in range(1, 8): a(f"v_fmac_f32 v42, v{16+i}, v{32+i}", f"v_fmac_f32 v43, v{24+i}, v{32+i}")
    a("s_nop 1")
    for ctl in ("quad_perm:[1,0,3,2]", "quad_perm:[2,3,0,1]", "row_half_mirror", "row_mirror"):
        for v in (40, 41, 42, 43): a(f"v_add_f32_dpp v{v}, v{v}, v{v} {ctl} row_mask:0xf bank_mask:0xf")
    a("s_nop 1", "v_permlane16_swap_b32 v40, v41", "v_permlane16_swap_b32 v42, v43", "v_add_f32 v40, v40, v41", "v_add_f32 v42, v42, v43",
      "s_nop 1", "v_permlane32_swap_b32 v40, v42", "v_add_f32 v40, v40, v42")
    a(f"v_mul_f32 v41, {f32bits(1/512):#x}, v40", f"v_mul_f32 v42, {f32bits(-LOG2E):#x}, v40", "v_exp_f32 v42, v42",
      "v_readlane_b32 s13, v41, 0", "v_readlane_b32 s14, v41, 16", "v_add_f32 v42, 1.0, v42", "v_rcp_f32 v42, v42")
    srd(a, 44, 38, 39, WS_G, 8192)
    a("s_lshl_b32 s6, s12, 2", "v_bfe_u32 v43, v0, 4, 1", "v_lshlrev_b32 v43, 2, v43",
      "s_mov_b32 exec_lo, 0", "s_mov_b32 exec_hi, 0x10001", f"buffer_store_dword v42, v43, s[44:47], s6 offen {ST}", "s_mov_b64 exec, -1")
    a("s_barrier")
    for i in range(8): a(f"v_subrev_f32 v{16+i}, s13, v{16+i}", f"v_subrev_f32 v{24+i}, s14, v{24+i}")
    a("v_mul_f32 v40, v16, v16", "v_mul_f32 v41, v24, v24")
    for i in range(1, 8): a(f"v_fmac_f32 v40, v{16+i}, v{16+i}", f"v_fmac_f32 v41, v{24+i}, v{24+i}")
    a("s_nop 1")
    for ctl in ("quad_perm:[1,0,3,2]", "quad_perm:[2,3,0,1]", "row_half_mirror", "row_mirror"):
        a(f"v_add_f32_dpp v40, v40, v40 {ctl} row_mask:0xf bank_mask:0xf", f"v_add_f32_dpp v41, v41, v41 {ctl} row_mask:0xf bank_mask:0xf", "s_nop 0")
    a("s_nop 0", "v_permlane16_swap_b32 v40, v41", "v_add_f32 v40, v40, v41", "v_mov_b32 v41, v40", "s_nop 1", "v_permlane32_swap_b32 v40, v41", "v_add_f32 v40, v40, v41",
      f"v_mov_b32 v41, {f32bits(1e-5):#x}", f"v_fmac_f32 v41, {f32bits(1/512):#x}, v40", "v_rsq_f32 v41, v41", "s_nop 1",
      "v_readlane_b32 s13, v41, 0", "v_readlane_b32 s14, v41, 16", "s_nop 1")
    for i in range(8): a(f"v_mul_f32 v{16+i}, s13, v{16+i}", f"v_mul_f32 v{24+i}, s14, v{24+i}")
    for i in range(4): a(f"v_cvt_pk_bf16_f32 v{4+i}, v{16+2*i}, v{17+2*i}", f"v_cvt_pk_bf16_f32 v{8+i}, v{24+2*i}, v{25+2*i}")
    a(f"s_mul_i32 s6, s10, {2*LN_STRIDE}", f"s_add_u32 s6, s6, {scratch}", "v_add_u32 v3, s6, v2",
      "ds_write_b128 v3, v[4:7]", f"ds_write_b128 v3, v[8:11] offset:{LN_STRIDE}")
    a("v_bfe_u32 v12, v0, 2, 2", f"s_movk_i32 s6, {LN_STRIDE}", "v_mul_u32_u24 v12, s6, v12", "v_lshrrev_b32 v13, 4, v0", "v_lshl_add_u32 v12, v13, 5, v12",
      "v_and_b32 v13, 3, v0", "v_lshl_add_u32 v12, v13, 3, v12", "s_lshl_b32 s6, s10, 8", f"s_add_u32 s6, s6, {scratch}", "v_add_u32 v12, s6, v12")
    srd(a, 44, 38, 39, WS_H, 0x200000)
    a("v_lshrrev_b32 v13, 5, v0", "v_lshlrev_b32 v13, 10, v13", "v_and_b32 v14, 31, v0", "v_lshl_add_u32 v13, v14, 4, v13",
      "s_lshr_b32 s6, s11, 1", "s_lshl_b32 s6, s6, 14", "s_and_b32 s7, s11, 1", "s_lshl_b32 s7, s7, 9", "s_add_u32 s6, s6, s7", "s_lshl_b32 s7, s10, 12", "s_add_u32 s6, s6, s7")
    a("s_waitcnt lgkmcnt(0)", "s_barrier")
    a("ds_read_b64_tr_b16 v[4:5], v12", f"ds_read_b64_tr_b16 v[6:7], v12 offset:{4*LN_STRIDE}",
      "ds_read_b64_tr_b16 v[8:9], v12 offset:128", f"ds_read_b64_tr_b16 v[10:11], v12 offset:{4*LN_STRIDE+128}", "s_waitcnt lgkmcnt(0)",
      f"buffer_store_dwordx4 v[4:7], v13, s[44:47], s6 offen {ST}", f"buffer_store_dwordx4 v[8:11], v13, s[44:47], s6 offen offset:2048 {ST}")
    for _ in range(nbar_after): a("s_barrier")

L_K = 0; L_V = 65536; L_RING = 131072; RING_W = 6144; L_MISC = 155648
L_FILL = L_MISC; L_RED = L_MISC + 16
TBOUND = 48.0

def sw_wait(a, addr_v, tmp_v, epoch, sleep=1):
    l = a.newlabel("L_w"); d = a.newlabel("L_wd")
    a.label(l)
    a(f"ds_read_b32 v{tmp_v}, v{addr_v}", "s_waitcnt lgkmcnt(0)", f"v_cmp_le_u32 vcc, {epoch}, v{tmp_v}", "s_cmp_eq_u64 vcc, -1", f"s_cbranch_scc1 {d}",
      f"s_sleep {sleep}", "s_sub_u32 s70, s70, 1", f"s_cbranch_scc0 {l}")
    a.label(d)

def wave_max2(a, x, y):
    for ctl in ("quad_perm:[1,0,3,2]", "quad_perm:[2,3,0,1]", "row_half_mirror", "row_mirror"):
        a(f"v_max_f32_dpp v{x}, v{x}, v{x} {ctl} row_mask:0xf bank_mask:0xf", f"v_max_f32_dpp v{y}, v{y}, v{y} {ctl} row_mask:0xf bank_mask:0xf", "s_nop 0")
    a("s_nop 0", f"v_permlane16_swap_b32 v{x}, v{y}", f"v_max_f32 v{x}, v{x}, v{y}", f"v_mov_b32 v{y}, v{x}", "s_nop 1", f"v_permlane32_swap_b32 v{x}, v{y}", f"v_max_f32 v{x}, v{x}, v{y}")

def attn_role(a, switch_iter=6, force_fallback=False):
    a.c("---- attention ----")
    S = [16, 32]; O = 48; CZ = 64; Q = 80; K = [84, 88]; V = [92, 100]; IDX = 108; KA = 109; VA = 110; G = 111; FA = 2
    a("s_lshl_b32 s8, s4, 2", "s_and_b32 s6, s5, 3", "s_add_u32 s8, s8, s6", "s_lshr_b32 s9, s5, 2", "s_lshl_b32 s9, s9, 3", "s_add_u32 s9, s9, s3")
    a(f"v_lshlrev_b32 v{KA}, 4, v0", "v_and_b32 v3, 15, v0", "v_lshrrev_b32 v4, 5, v0", "v_lshlrev_b32 v4, 8, v4", "v_lshl_add_u32 v3, v3, 4, v4",
      f"v_add_u32 v{VA}, {L_V}, v3", "v_and_b32 v3, 3, v0", f"v_lshlrev_b32 v3, 2, v3", f"v_add_u32 v{FA}, {L_FILL}, v3",
      "v_and_b32 v5, 31, v0", "v_lshlrev_b32 v5, 2, v5", "v_lshlrev_b32 v6, 2, v0")
    a("s_waitcnt lgkmcnt(0)")
    srd(a, 40, 38, 39, WS_Q, 0x200000)
    srd(a, 44, 38, 39, WS_G, 0x6000)
    a("s_lshl_b32 s6, s8, 16", "s_lshl_b32 s7, s9, 10", "s_add_u32 s6, s6, s7", f"buffer_load_dwordx4 {vr(Q,4)}, v{KA}, s[40:43], s6 offen {LD}",
      "s_lshl_b32 s6, s9, 7", f"buffer_load_dword v{G}, v5, s[44:47], s6 offen {LD}")
    a("s_lshr_b32 s6, s8, 1", "s_add_u32 s7, s6, 16", "s_mul_i32 s6, s6, 43691", "s_lshr_b32 s6, s6, 17", "s_mul_i32 s7, s7, 43691", "s_lshr_b32 s7, s7, 17",
      "s_lshl_b32 s6, s6, 8", "s_add_u32 s6, s6, 0x2000", "s_lshl_b32 s7, s7, 8", "s_add_u32 s7, s7, 0x4000",
      f"buffer_load_dword v7, v6, s[44:47], s6 offen {LD}", f"buffer_load_dword v8, v6, s[44:47], s7 offen {LD}")
    for r in range(16): a(f"v_mov_b32 v{O+r}, 0", f"v_mov_b32 v{CZ+r}, 0", f"v_mov_b32 v{V[0]+r}, 0x3f803f80")
    for r in range(8, 16): a(f"v_mov_b32 v{S[1]+r}, 0")
    a(f"v_mov_b32 v{IDX}, 0xdddddddd", "s_mov_b32 s12, 0xffff", "s_mov_b32 s13, 0xffff")
    srd(a, 40, 38, 39, WS_O, 0x200000)
    a("s_barrier")
    a("s_waitcnt vmcnt(0)")
    wave_max2(a, 7, 8)
    a("s_nop 0", "v_readlane_b32 s6, v7, 16", "s_nop 1", "v_mul_f32 v7, s6, v7", f"v_cmp_ge_f32 vcc, {f32bits(TBOUND*TBOUND):#x}, v7", "s_bitcmp1_b32 vcc_lo, 0")
    lfast = a.newlabel("L_fast")
    if not force_fallback: a(f"s_cbranch_scc1 {lfast}")
    sw_wait(a, FA, 3, 3)
    lfb = a.newlabel("L_fb")
    a("v_mov_b32 v9, 0xff800000", f"v_mov_b32 v10, v{KA}", "s_mov_b32 s6, 64")
    a.label(lfb)
    a(f"ds_read_b128 {vr(K[0],4)}, v10", "v_add_u32 v10, 1024, v10", "s_waitcnt lgkmcnt(0)", f"{MFMA} {vr(S[0],16)}, {vr(K[0],4)}, {vr(Q,4)}, 0", "s_nop 15")
    for r in range(8): a(f"v_max3_f32 v9, v9, v{S[0]+2*r}, v{S[0]+2*r+1}")
    a("s_sub_u32 s6, s6, 1", "s_cmp_lg_u32 s6, 0", f"s_cbranch_scc1 {lfb}")
    a("v_mov_b32 v10, v9", "s_nop 1", "v_permlane32_swap_b32 v9, v10", "v_max_f32 v9, v9, v10")
    for r in range(16): a(f"v_sub_f32 v{CZ+r}, 0, v9")
    a.label(lfast)
    sw_wait(a, FA, 3, 1)
    a(f"ds_read_b128 {vr(K[0],4)}, v{KA}", f"ds_read_b128 {vr(K[1],4)}, v{KA} offset:1024",
      "s_mov_b64 exec, s[12:13]", f"ds_read_b128 {vr(V[0],4)}, v{VA}", f"ds_read_b128 {vr(V[0]+4,4)}, v{VA} offset:512", "s_mov_b64 exec, -1",
      "s_mov_b32 s14, 0", "s_movk_i32 s15, 0xa")
    lnp = a.newlabel("L_np")
    a("s_movk_i32 s11, 0x7fff", "s_cmp_lt_u32 s3, 4", f"s_cbranch_scc1 {lnp}", "s_setprio 1", f"s_movk_i32 s11, {switch_iter}")
    a.label(lnp)
    a("s_waitcnt lgkmcnt(0)", f"{MFMA} {vr(S[0],16)}, {vr(K[0],4)}, {vr(Q,4)}, {vr(CZ,16)}", "s_nop 11")
    lloop = a.newlabel("L_att"); lchk = a.newlabel("L_chk"); lret = a.newlabel("L_ret"); lsw = a.newlabel("L_sw"); lret2 = a.newlabel("L_ret2")
    a.raw(".p2align 6")
    a.label(lloop)
    a("s_bitcmp1_b32 s15, s14", f"s_cbranch_scc1 {lchk}")
    a.label(lret)
    a("s_cmp_eq_u32 s14, s11", f"s_cbranch_scc1 {lsw}")
    a.label(lret2)
    for t in range(8):
        cur = S[t % 2]; nxt = S[(t + 1) % 2]
        ins = {i: [] for i in range(16)}
        vn = V[(t + 1) % 2]
        ins[2] += [f"{SMF} {vr(O,16)}, {vr(vn+4,4)}, {vr(nxt+8,8)}, v{IDX}", "s_mov_b64 exec, s[12:13]",
                   f"ds_read_b128 {vr(vn,4)}, v{VA} offset:{(t+1)*1024}", f"ds_read_b128 {vr(vn+4,4)}, v{VA} offset:{(t+1)*1024+512}", "s_mov_b64 exec, -1"]
        ins[5] += ["s_waitcnt lgkmcnt(2)", f"{MFMA} {vr(nxt,16)}, {vr(K[(t+1)%2],4)}, {vr(Q,4)}, {vr(CZ,16)}",
                   f"ds_read_b128 {vr(K[t%2],4)}, v{KA} offset:{(t+2)*1024}"]
        ins[11] += [f"{SMF} {vr(O,16)}, {vr(V[t%2],4)}, {vr(cur,8)}, v{IDX}"]
        for i in range(16):
            for x in ins[i]: a(x)
            a(f"v_exp_f32 v{cur+i}, v{cur+i}")
    a(f"v_add_u32 v{KA}, 8192, v{KA}", f"v_add_u32 v{VA}, 8192, v{VA}", "s_add_u32 s14, s14, 1", "s_cmp_lt_u32 s14, 8", f"s_cbranch_scc1 {lloop}")
    a(f"{SMF} {vr(O,16)}, {vr(V[1]+4,4)}, {vr(S[1]+8,8)}, v{IDX}")
    a("s_lshl_b32 s6, s9, 15", "s_lshl_b32 s7, s8, 10", "s_add_u32 s6, s6, s7", "v_lshlrev_b32 v3, 4, v0", "s_nop 8")
    a(f"v_rcp_f32 v4, v{O+8}", "s_nop 0", f"v_mul_f32 v4, v4, v{G}")
    for r in range(8): a(f"v_mul_f32 v{O+r}, v{O+r}, v4")
    for r in range(4): a(f"v_cvt_pk_bf16_f32 v{8+r}, v{O+2*r}, v{O+2*r+1}")
    a(f"buffer_store_dwordx4 v[8:11], v3, s[40:43], s6 offen {ST}", "s_waitcnt lgkmcnt(0)")
    ldone = a.newlabel("L_attdone")
    a(f"s_branch {ldone}")
    a.label(lchk)
    a("s_lshr_b32 s6, s14, 1", "s_add_u32 s6, s6, 2")
    sw_wait(a, FA, 3, "s6")
    a(f"s_branch {lret}")
    a.label(lsw)
    a("s_setprio 0", f"s_branch {lret2}")
    a.label(ldone)

ACC = 16; WF = [80, 88]; DF = [96, 104, 112, 120]
def mix_common(a):
    a(f"s_mul_i32 s50, s10, {RING_W}", f"s_add_u32 s50, s50, {L_RING}",
      "s_and_b32 s6, s10, 1", "s_lshl_b32 s6, s6, 10", "v_lshlrev_b32 v3, 4, v0", "v_add_u32 v3, s6, v3", "v_xor_b32 v6, 1024, v3",
      "s_lshl_b32 s6, s10, 2", f"s_add_u32 s6, s6, {L_RED}", "v_mov_b32 v12, s6", "v_and_b32 v13, 3, v0", "v_lshlrev_b32 v13, 2, v13", f"v_add_u32 v13, {L_RED}, v13")

def w_addr(a, rowstride, use_phi, swap_sgpr_expr):
    a("v_lshrrev_b32 v7, 3, v0", f"s_movk_i32 s6, {rowstride}", "v_mul_u32_u24 v2, s6, v7", "v_bfe_u32 v7, v0, 4, 1", "v_lshlrev_b32 v7, 2, v7",
      "v_and_b32 v8, 7, v0", "v_xor_b32 v7, v7, v8", "v_lshl_add_u32 v2, v7, 4, v2")
    a("v_lshrrev_b32 v4, 5, v0", "v_lshlrev_b32 v4, 3, v4", "v_bfe_u32 v7, v0, 2, 2", "v_add_u32 v4, v4, v7", "v_lshlrev_b32 v4, 7, v4",
      "v_bfe_u32 v7, v0, 4, 1", "v_lshl_add_u32 v4, v7, 5, v4")
    if use_phi:
        a("v_and_b32 v7, 1, v0", "v_lshl_add_u32 v4, v7, 4, v4", "v_bfe_u32 v7, v0, 1, 1", "v_lshl_add_u32 v4, v7, 3, v4")
    else:
        a("v_and_b32 v7, 3, v0", "v_lshl_add_u32 v4, v7, 3, v4")
    a("v_bfe_u32 v7, v0, 3, 1", "v_lshl_add_u32 v4, v7, 6, v4", swap_sgpr_expr, "v_xor_b32 v4, s6, v4", "v_add_u32 v4, s50, v4", "v_xor_b32 v5, 64, v4")

NS = 3; ND = 4
class Gemm:
    def __init__(self, a, nsteps, rowstride, order, dld=""):
        self.a = a; self.n = nsteps; self.rs = rowstride; self.order = order; self.q = []; self.dld = dld
    def W(self, i):
        if i >= self.n: return
        a = self.a
        a(f"s_add_u32 m0, s50, {(i % NS) * 2048}", "s_nop 0", "buffer_load_dwordx4 v2, s[40:43], s51 offen lds",
          f"s_add_u32 m0, s50, {(i % NS) * 2048 + 1024}", f"s_add_u32 s51, s51, {16 * self.rs}", "buffer_load_dwordx4 v2, s[40:43], s52 offen lds", f"s_add_u32 s52, s52, {16 * self.rs}")
        self.q += [("W", i)] * 2
    def D(self, i):
        if i >= self.n: return
        d = DF[i % ND]
        self.a(f"buffer_load_dwordx4 {vr(d,4)}, v3, s[44:47], s53 offen {self.dld}", f"buffer_load_dwordx4 {vr(d+4,4)}, v6, s[44:47], s53 offen {self.dld}", "s_add_u32 s53, s53, 16384")
        self.q += [("D", i)] * 2
    def wait(self, need):
        last = max(k for k, x in enumerate(self.q) if x in need)
        self.a(f"s_waitcnt vmcnt({len(self.q) - 1 - last})")
    def tr(self, i):
        f = WF[i % 2]
        for b in range(2):
            for r in range(2):
                self.a(f"ds_read_b64_tr_b16 {vr(f+4*b+2*r,2)}, v{4+b} offset:{(i % NS) * 2048 + r * 512}")
    def pro_W(self):
        for i in range(NS): self.W(i)
    def pro_D(self):
        for i in range(ND): self.D(i)
    def main(self):
        a = self.a
        self.wait([("W", 0)]); self.tr(0)
        for i in range(self.n):
            a("s_waitcnt lgkmcnt(0)")
            self.W(i + NS)
            self.wait([("W", i + 1), ("D", i)] if i + 1 < self.n else [("D", i)])
            if i + 1 < self.n: self.tr(i + 1)
            for b in range(2):
                for c in range(2):
                    d = vr(ACC + 16 * (2*b + c), 16); cin = "0" if i == 0 else d
                    w = vr(WF[i % 2] + 4*b, 4); x = vr(DF[i % ND] + 4*c, 4)
                    a(f"{MFMA} {d}, {w}, {x}, {cin}" if self.order == "WD" else f"{MFMA} {d}, {x}, {w}, {cin}")
            self.D(i + ND)

def reduce4(a, epoch0):
    a("v_lshlrev_b32 v7, 4, v0", "v_add_u32 v8, s50, v7")
    for k in (1, 2, 3):
        a(f"s_xor_b32 s6, s10, {k}", f"s_mul_i32 s6, s6, {RING_W}", f"s_add_u32 s6, s6, {L_RING + (k-1)*2048}", f"v_add_u32 v{8+k}, s6, v7")
    a("s_nop 4")
    e = epoch0
    for p in range(2):
        for k in (1, 2, 3):
            for q in range(2):
                a(f"ds_write_b128 v8, {vr(ACC + 16*k + 8*p + 4*q, 4)} offset:{(k-1)*2048 + q*1024}")
        e += 1
        a(f"v_mov_b32 v7, {e}", "s_waitcnt lgkmcnt(0)", "ds_write_b32 v12, v7")
        sw_wait(a, 13, 7, e, sleep=0)
        for k in (1, 2, 3):
            for q in range(2):
                a(f"ds_read_b128 {vr(80 + 8*(k-1) + 4*q, 4)}, v{8+k} offset:{q*1024}")
        e += 1
        a(f"v_mov_b32 v7, {e}", "s_waitcnt lgkmcnt(0)", "ds_write_b32 v12, v7")
        for r in range(8):
            a(f"v_add_f32 v{ACC+8*p+r}, v{ACC+8*p+r}, v{80+r}", f"v_add_f32 v{88+r}, v{88+r}, v{96+r}")
        for r in range(8): a(f"v_add_f32 v{ACC+8*p+r}, v{ACC+8*p+r}, v{88+r}")
        sw_wait(a, 13, 7, e, sleep=0)
    return e

def kv_fill(a):
    a("s_lshl_b32 s8, s4, 2", "s_and_b32 s6, s5, 3", "s_add_u32 s8, s8, s6", "s_lshl_b32 s8, s8, 16", "s_lshl_b32 s9, s10, 10", "s_add_u32 s8, s8, s9",
      "s_add_u32 s11, s8, 0x200000", "v_lshlrev_b32 v7, 4, v0")
    srd(a, 40, 38, 39, WS_K, 0x400000)
    for i in range(16):
        a(f"s_add_u32 m0, s9, {L_K + i*4096}", "s_nop 0", f"buffer_load_dwordx4 v7, s[40:43], s8 offen {LD} lds",
          f"s_add_u32 m0, s9, {L_V + i*4096}", "s_add_u32 s8, s8, 4096", f"buffer_load_dwordx4 v7, s[40:43], s11 offen {LD} lds", "s_add_u32 s11, s11, 4096")

GC2 = -2.0 * LOG2E * math.sqrt(2.0 / math.pi); GC1 = GC2 * 0.044715
def mixer_role(a, flag_tag="1"):
    a.c("---- mixer ----")
    a("s_sub_u32 s10, s3, 8")
    mix_common(a)
    a("s_lshl_b32 s6, s10, 2", f"s_add_u32 s6, s6, {L_FILL}", "v_mov_b32 v14, s6", "v_mov_b32 v7, 0", "ds_write_b32 v14, v7", "ds_write_b32 v12, v7")
    a("s_waitcnt lgkmcnt(0)", "s_barrier")
    kv_fill(a)
    lskip1 = a.newlabel("L_skip1"); lg2 = a.newlabel("L_g2")
    a("s_and_b32 s54, s4, 1", "s_lshl_b32 s54, s54, 2", "s_and_b32 s6, s5, 3", "s_add_u32 s54, s54, s6",
      "s_lshr_b32 s55, s4, 1", "s_mul_i32 s55, s55, 7", "s_lshr_b32 s6, s5, 2", "s_add_u32 s55, s55, s6")
    a("s_cmp_ge_u32 s5, 28", f"s_cbranch_scc1 {lskip1}")
    w_addr(a, 3584, True, "s_lshr_b32 s6, s10, 1\ns_lshl_b32 s6, s6, 6")
    srd(a, 40, 24, 25, 0, 2048 * 3584)
    srd(a, 44, 38, 39, WS_H, 0x200000)
    a(f"s_mul_i32 s51, s10, {512*3584}", "s_lshl_b32 s6, s55, 7", "s_add_u32 s51, s51, s6", f"s_add_u32 s52, s51, {8*3584}",
      "s_lshl_b32 s53, s10, 19", "s_lshl_b32 s6, s54, 11", "s_add_u32 s53, s53, s6")
    g = Gemm(a, 32, 3584, "WD", LD)
    g.q = [("F", i) for i in range(16) for _ in range(2)]
    srd(a, 56, 26, 27, 0, 3584)
    a("v_lshrrev_b32 v7, 5, v0", "v_lshlrev_b32 v7, 4, v7", "s_lshl_b32 s6, s55, 7", "s_lshr_b32 s7, s10, 1", "s_lshl_b32 s7, s7, 6", "s_add_u32 s6, s6, s7",
      "buffer_load_dwordx4 v[128:131], v7, s[56:59], s6 offen", "buffer_load_dwordx4 v[132:135], v7, s[56:59], s6 offen offset:32")
    g.q += [("B", 0)] * 2
    g.pro_W(); g.pro_D()
    for e, last in ((1, 2), (2, 6), (3, 15)):
        g.wait([("F", last)])
        a(f"v_mov_b32 v7, {e}", "ds_write_b32 v14, v7")
    g.main()
    a("s_nop 7")
    e = reduce4(a, 0)
    for i in range(8):
        a(f"v_lshlrev_b32 v{80+2*i}, 16, v{128+i}", f"v_and_b32 v{81+2*i}, 0xffff0000, v{128+i}")
    a(f"s_mov_b32 s6, {f32bits(GC1):#x}", f"v_mov_b32 v7, {f32bits(GC2):#x}")
    for r in range(16): a(f"v_add_f32 v{ACC+r}, v{ACC+r}, v{80+r}")
    for r in range(16): a(f"v_mul_f32 v{80+r}, v{ACC+r}, v{ACC+r}")
    for r in range(16): a(f"v_fma_f32 v{80+r}, v{80+r}, s6, v7")
    for r in range(16): a(f"v_mul_f32 v{80+r}, v{80+r}, v{ACC+r}")
    for r in range(16): a(f"v_exp_f32 v{80+r}, v{80+r}")
    for r in range(16): a(f"v_add_f32 v{80+r}, 1.0, v{80+r}")
    for r in range(16): a(f"v_rcp_f32 v{80+r}, v{80+r}")
    for r in range(16): a(f"v_mul_f32 v{ACC+r}, v{ACC+r}, v{80+r}")
    for r in range(8): a(f"v_cvt_pk_bf16_f32 v{80+r}, v{ACC+2*r}, v{ACC+2*r+1}")
    srd(a, 44, 38, 39, WS_U, 112 * 16384)
    a("v_and_b32 v8, 31, v0"); phi(a, 9, 8, 10)
    a("v_lshrrev_b32 v8, 5, v0", "v_lshlrev_b32 v8, 9, v8", "v_lshl_add_u32 v8, v9, 4, v8",
      "s_lshl_b32 s6, s55, 2", "s_and_b32 s7, s10, 2", "s_add_u32 s6, s6, s7", "s_lshl_b32 s6, s6, 14",
      "s_lshl_b32 s7, s54, 1", "s_and_b32 s11, s10, 1", "s_add_u32 s7, s7, s11", "s_lshl_b32 s7, s7, 10", "s_add_u32 s6, s6, s7", "s_add_u32 s7, s6, 16384",
      f"buffer_store_dwordx4 v[80:83], v8, s[44:47], s6 offen {ST}", f"buffer_store_dwordx4 v[84:87], v8, s[44:47], s7 offen {ST}")
    srd(a, 56, 38, 39, WS_FL, 0x2000)
    a("s_lshl_b32 s6, s54, 2", "s_lshr_b32 s7, s4, 1", "s_add_u32 s6, s6, s7", "s_lshl_b32 s6, s6, 8", "s_lshr_b32 s7, s5, 2", "s_lshl_b32 s7, s7, 2", "s_add_u32 s7, s7, s10",
      "s_lshl_b32 s7, s7, 2", "s_add_u32 s6, s6, s7", f"v_mov_b32 v7, {flag_tag}", "v_mov_b32 v8, 0", "s_waitcnt vmcnt(0)",
      "s_mov_b64 exec, 1", "buffer_store_dword v7, v8, s[56:59], s6 offen sc1", "s_mov_b64 exec, -1", f"s_branch {lg2}")
    a.label(lskip1)
    for ee, n in ((1, 26), (2, 18), (3, 0)):
        a(f"s_waitcnt vmcnt({n})", f"v_mov_b32 v7, {ee}", "ds_write_b32 v14, v7")
    a(f"v_mov_b32 v7, {e}", "ds_write_b32 v12, v7")
    srd(a, 56, 38, 39, WS_FL, 0x2000)
    a.label(lg2)
    a("s_and_b32 s54, s5, 7", "s_lshl_b32 s55, s4, 2", "s_lshr_b32 s6, s5, 3", "s_add_u32 s55, s55, s6")
    w_addr(a, 4096, False, "s_lshr_b32 s6, s10, 1\ns_lshl_b32 s6, s6, 6")
    srd(a, 40, 28, 29, 0, 1792 * 4096)
    srd(a, 44, 38, 39, WS_U, 112 * 16384)
    a(f"s_mul_i32 s51, s10, {448*4096}", "s_lshl_b32 s6, s55, 7", "s_add_u32 s51, s51, s6", f"s_add_u32 s52, s51, {8*4096}",
      f"s_mul_i32 s53, s10, {28*16384}", "s_lshl_b32 s6, s54, 11", "s_add_u32 s53, s53, s6")
    g = Gemm(a, 28, 4096, "DW", LD)
    g.pro_W()
    srd(a, 60, 38, 39, WS_G, 8192)
    srd(a, 64, 30, 31, 0, 4096)
    a("s_lshl_b32 s6, s55, 6", "s_lshr_b32 s7, s10, 1", "s_lshl_b32 s7, s7, 5", "s_add_u32 s6, s6, s7", "v_and_b32 v7, 31, v0", "v_add_u32 v7, s6, v7",
      "v_lshlrev_b32 v8, 2, v7", "v_lshlrev_b32 v7, 1, v7", f"buffer_load_dword v128, v8, s[60:63], 0 offen {LD}", "buffer_load_ushort v129, v7, s[64:67], 0 offen")
    lp = a.newlabel("L_poll"); lpd = a.newlabel("L_polld")
    a("s_lshl_b32 s6, s54, 2", "s_add_u32 s6, s6, s10", "s_lshl_b32 s6, s6, 8", "v_lshlrev_b32 v7, 2, v0", "s_mov_b32 s12, 0xfffffff", "s_mov_b32 s13, 0", "s_mov_b64 exec, s[12:13]")
    a.label(lp)
    a("buffer_load_dword v8, v7, s[56:59], s6 offen sc1", "s_waitcnt vmcnt(0)", f"v_cmp_eq_u32 vcc, {flag_tag}, v8", "s_cmp_eq_u64 vcc, s[12:13]", f"s_cbranch_scc1 {lpd}", "s_sleep 2", "s_sub_u32 s70, s70, 1", f"s_cbranch_scc0 {lp}")
    a.label(lpd)
    a("s_mov_b64 exec, -1")
    g.pro_D()
    g.main()
    a("s_nop 7")
    e = reduce4(a, e)
    a("v_lshlrev_b32 v129, 16, v129", "v_sub_f32 v128, 1.0, v128")
    for r in range(16): a(f"v_add_f32 v{ACC+r}, v{ACC+r}, v129")
    for r in range(16): a(f"v_mul_f32 v{ACC+r}, v{ACC+r}, v128")
    srd(a, 44, 38, 39, WS_YB, 0x400000)
    a("s_lshl_b32 s6, s55, 3", "s_add_u32 s6, s6, s54", "s_lshl_b32 s6, s6, 2", "s_add_u32 s6, s6, s10", "s_lshl_b32 s6, s6, 12", "v_lshlrev_b32 v7, 4, v0")
    for q in range(4): a(f"buffer_store_dwordx4 {vr(ACC+4*q,4)}, v7, s[44:47], s6 offen offset:{q*1024} {ST}")

def outproj_kernel(a):
    a("s_mov_b32 s10, s3", "s_and_b32 s54, s5, 7", "s_lshl_b32 s55, s4, 2", "s_lshr_b32 s6, s5, 3", "s_add_u32 s55, s55, s6")
    a("s_and_b32 s11, s10, 1", "s_lshl_b32 s50, s11, 15")
    w_addr(a, 1024, True, "s_lshl_b32 s6, s11, 6")
    a("v_lshlrev_b32 v3, 4, v0", "s_waitcnt lgkmcnt(0)")
    srd(a, 40, 20, 21, 0, 512 * 1024)
    srd(a, 44, 38, 39, WS_O, 0x200000)
    srd(a, 56, 38, 39, WS_YB, 0x400000)
    a("s_lshr_b32 s12, s10, 1", "s_lshl_b32 s6, s11, 8", "s_lshl_b32 s7, s12, 7", "s_add_u32 s6, s6, s7", "s_lshl_b32 s13, s6, 7",
      "s_lshl_b32 s51, s6, 10", "s_lshl_b32 s7, s54, 7", "s_add_u32 s51, s51, s7")
    for i in range(16):
        a(f"s_add_u32 m0, s13, {i*1024}", "s_nop 0", "buffer_load_dwordx4 v2, s[40:43], s51 offen lds", "s_add_u32 s51, s51, 8192")
    a("s_lshl_b32 s6, s55, 3", "s_add_u32 s6, s6, s54", "s_lshl_b32 s6, s6, 2", "s_add_u32 s6, s6, s10", "s_lshl_b32 s6, s6, 12")
    for q in range(4): a(f"buffer_load_dwordx4 {vr(ACC+4*q,4)}, v3, s[56:59], s6 offen offset:{q*1024}")
    a("s_lshl_b32 s6, s55, 1", "s_add_u32 s6, s6, s12", "s_lshl_b32 s6, s6, 15", "s_lshl_b32 s7, s11, 14", "s_add_u32 s6, s6, s7")
    for i in range(16):
        a(f"buffer_load_dwordx4 {vr(64+4*i,4)}, v3, s[44:47], s6 offen offset:{(i%4)*1024}")
        if i % 4 == 3: a("s_add_u32 s6, s6, 4096")
    a("s_waitcnt vmcnt(20)", "s_barrier")
    W2 = [48, 56]
    def tr(i):
        f = W2[i % 2]
        for b in range(2):
            for r in range(2): a(f"ds_read_b64_tr_b16 {vr(f+4*b+2*r,2)}, v{4+b} offset:{i*2048 + r*512}")
    tr(0)
    for i in range(16):
        if i + 1 < 16: tr(i + 1)
        a(f"s_waitcnt vmcnt({15-i}) lgkmcnt({4 if i + 1 < 16 else 0})")
        a(f"{MFMA} {vr(ACC,16)}, {vr(W2[i%2],4)}, {vr(64+4*i,4)}, {vr(ACC,16)}")
        a(f"{MFMA} {vr(ACC+16,16)}, {vr(W2[i%2]+4,4)}, {vr(64+4*i,4)}, {'0' if i == 0 else vr(ACC+16,16)}")
    a("s_lshl_b32 s6, s10, 12", "s_add_u32 s6, s6, 65536", "v_add_u32 v7, s6, v3", "v_xor_b32 v8, 4096, v7")
    srd(a, 44, 34, 35, 0, 0x200000)
    a("v_and_b32 v9, 31, v0", "v_lshlrev_b32 v9, 10, v9", "v_lshrrev_b32 v10, 5, v0", "v_lshl_add_u32 v9, v10, 4, v9",
      "s_lshl_b32 s6, s55, 1", "s_add_u32 s6, s6, s12", "s_lshl_b32 s6, s6, 15", "s_lshl_b32 s7, s54, 1", "s_add_u32 s7, s7, s11", "s_lshl_b32 s7, s7, 6", "s_add_u32 s6, s6, s7", "s_nop 2")
    for q in range(4): a(f"ds_write_b128 v7, {vr(ACC+16+4*q,4)} offset:{q*1024}")
    a("s_waitcnt lgkmcnt(0)", "s_barrier")
    for q in range(4): a(f"ds_read_b128 {vr(64+4*q,4)}, v8 offset:{q*1024}")
    a("s_waitcnt lgkmcnt(0)")
    for r in range(16): a(f"v_add_f32 v{ACC+r}, v{ACC+r}, v{64+r}")
    for r in range(8): a(f"v_cvt_pk_bf16_f32 v{64+r}, v{ACC+2*r}, v{ACC+2*r+1}")
    a("buffer_store_dwordx4 v[64:67], v9, s[44:47], s6 offen", "buffer_store_dwordx4 v[68:71], v9, s[44:47], s6 offen offset:32")
```

```python
import sys
sys.path.insert(0, "gen")
from parts import *
import parts

HDR = open("gated_mix__softmax_full_mha__mixer_token_mlp__prompt.s.ref").read().split("; Override launch")[0]

def build(path, force_fallback=False, switch_iter=6):
    a = Asm()
    a.raw(HDR.rstrip())
    a.raw("; @launch kernel=gm_qkv_kernel grid=(256,1,1) block=(768,1,1) lds=124928")
    a.raw("; @launch kernel=gm_attn_kernel grid=(256,1,1) block=(768,1,1) lds=163840")
    a.raw("; @launch kernel=gm_out_kernel grid=(256,1,1) block=(256,1,1) lds=81920")
    a.raw('.amdgcn_target "amdgcn-amd-amdhsa--gfx950"')
    a.raw(".text")
    kernel_header(a, "gm_qkv_kernel")
    prologue(a, 256, "L_end1"); qkv_map(a)
    a("s_cmp_ge_u32 s3, 8", "s_cbranch_scc1 L_k1_ln", "s_cmp_ge_u32 s3, 4", "s_cbranch_scc1 L_k1_prod")
    a("s_waitcnt lgkmcnt(0)")
    qkv_consumer(a); a("s_endpgm")
    a.label("L_k1_prod"); qkv_producer(a); a("s_endpgm")
    a.label("L_k1_ln"); ln_role(a, 4 * QKV_SLOT)
    srd(a, 44, 38, 39, WS_FL, 0x2000)
    a("s_lshl_b32 s6, s2, 8", "v_lshlrev_b32 v2, 2, v0", "v_mov_b32 v3, 0", "buffer_store_dword v3, v2, s[44:47], s6 offen")
    a.label("L_end1"); a("s_endpgm")
    kernel_header(a, "gm_attn_kernel")
    prologue(a, 256, "L_end2")
    a("s_cmp_ge_u32 s3, 8", "s_cbranch_scc1 L_k2_mix")
    attn_role(a, switch_iter=switch_iter, force_fallback=force_fallback); a("s_endpgm")
    a.label("L_k2_mix"); a("s_waitcnt lgkmcnt(0)"); mixer_role(a)
    a.label("L_end2"); a("s_endpgm")
    kernel_header(a, "gm_out_kernel")
    prologue(a, 256, "L_end3")
    outproj_kernel(a)
    a.label("L_end3"); a("s_endpgm")
    a.raw('.section .rodata,"a"')
    a.raw(kernel_desc("gm_qkv_kernel", 120)); a.raw(kernel_desc("gm_attn_kernel", 136)); a.raw(kernel_desc("gm_out_kernel", 128))
    open(path, "w").write(a.text())

if __name__ == "__main__":
    build(sys.argv[1] if len(sys.argv) > 1 else "gated_mix__softmax_full_mha__mixer_token_mlp__prompt.s")
    build("fallback.s", force_fallback=True)
```
